```python
import torch

def _softmax(x, axis=-1):
    return torch.softmax(x, dim=axis)

def _gelu(x):
    return torch.nn.functional.gelu(x, approximate='tanh')

def _silu(x):
    return torch.nn.functional.silu(x)

def _sigmoid(x):
    return torch.sigmoid(x)

def _layernorm(x, axis=-1, eps=1e-05):
    m = x.mean(dim=axis, keepdim=True)
    v = x.var(dim=axis, keepdim=True, unbiased=False)
    return (x - m) / torch.sqrt(v + eps)

def _scatter_add(tgt, idx, src, axis=0):
    return tgt.clone().index_add_(axis, idx, src)

def _segment_sum(src, seg, n):
    out = torch.zeros((n,) + src.shape[1:], dtype=src.dtype)
    return out.index_add_(0, seg, src)

def _pad(x, pw):
    flat = tuple((v for pair in reversed(pw) for v in pair))
    return torch.nn.functional.pad(x, flat)
kernel_name = 'standalone__kv_cache_quant_pre_rope_vs_post_rope__sampling'

def setup_inputs():

    _w = lambda a: (lambda t: t.to(torch.bfloat16) if t.is_floating_point() else t)(torch.as_tensor(a))
    B, Sq, Skv = (8, 1, 8192)
    H, Dh0 = (8, 128)
    G = -1 if -1 > 0 else Dh0
    G = max(2, G // 2 * 2)
    Dh = max(G, Dh0 // G * G)
    Skv = max(Skv, Sq)
    ng = Dh // G
    bits = 4 if 4 > 1 else 4
    bits = max(2, min(8, bits))
    qmax = (1 << bits) - 1
    half = Dh // 2
    inv = 1.0 / 10000.0 ** (torch.arange(half) / max(1, half))
    ang_k = torch.arange(Skv)[:, None] * inv[None, :]
    ang_q = torch.arange(Skv - Sq, Skv)[:, None] * inv[None, :]
    kc = torch.cat([torch.cos(ang_k), torch.cos(ang_k)], dim=-1)
    ks = torch.cat([torch.sin(ang_k), torch.sin(ang_k)], dim=-1)
    qc = torch.cat([torch.cos(ang_q), torch.cos(ang_q)], dim=-1)
    qs = torch.cat([torch.sin(ang_q), torch.sin(ang_q)], dim=-1)
    qk_i = torch.randint(0, qmax + 1, (B, H, Skv, Dh)).to(torch.int32)
    qv_i = torch.randint(0, qmax + 1, (B, H, Skv, Dh)).to(torch.int32)
    ksc = torch.abs((lambda *s: torch.randn(*s, dtype=torch.bfloat16) * 0.2)(B, H, Skv, ng)) * 0.1 + 0.01
    kzp = torch.full((B, H, Skv, ng), qmax / 2.0)
    vsc = torch.abs((lambda *s: torch.randn(*s, dtype=torch.bfloat16) * 0.2)(B, H, Skv, ng)) * 0.1 + 0.01
    vzp = torch.full((B, H, Skv, ng), qmax / 2.0)
    return {'q': _w((lambda *s: torch.randn(*s, dtype=torch.bfloat16) * 6.4)(B, H, Sq, Dh) * 0.5), 'qk': _w(qk_i), 'k_scales': _w(ksc), 'k_zeros': _w(kzp), 'qv': _w(qv_i), 'v_scales': _w(vsc), 'v_zeros': _w(vzp), 'q_cos': _w(qc), 'q_sin': _w(qs), 'k_cos': _w(kc), 'k_sin': _w(ks)}

def reference(q, qk, k_scales, k_zeros, qv, v_scales, v_zeros, q_cos, q_sin, k_cos, k_sin):
    B, H, Sq, Dh = q.shape
    ng = k_scales.shape[-1]
    G = Dh // ng
    half = Dh // 2
    ks = (lambda x, n, axis: torch.repeat_interleave(x, n, dim=axis))(k_scales, G, axis=-1)
    kz = (lambda x, n, axis: torch.repeat_interleave(x, n, dim=axis))(k_zeros, G, axis=-1)
    k = ((lambda x, dt: x.to(dt))(qk, q.dtype) - kz) * ks
    vs = (lambda x, n, axis: torch.repeat_interleave(x, n, dim=axis))(v_scales, G, axis=-1)
    vz = (lambda x, n, axis: torch.repeat_interleave(x, n, dim=axis))(v_zeros, G, axis=-1)
    v = ((lambda x, dt: x.to(dt))(qv, q.dtype) - vz) * vs
    k1 = k[..., :half].clone()
    k2 = k[..., half:].clone()
    krh = torch.concatenate([-k2, k1], axis=-1)
    kr = k * k_cos[None, None, :, :] + krh * k_sin[None, None, :, :]
    q1 = q[..., :half].clone()
    q2 = q[..., half:].clone()
    qrh = torch.concatenate([-q2, q1], axis=-1)
    qr = q * q_cos[None, None, :, :] + qrh * q_sin[None, None, :, :]
    logits = torch.einsum('bhqd,bhkd->bhqk', qr, kr) * float(Dh) ** (-0.5)
    attn = _softmax(logits, axis=-1)
    out = torch.einsum('bhqk,bhkd->bhqd', attn, v)
    return out
```

```python
import re

REG_RE = re.compile(r'^(v|s|a)(\d+)$|^(v|s|a)\[(\d+):(\d+)\]$')

def regs_of(tok):
    tok = tok.strip()
    neg = tok.lstrip('-')
    if neg.startswith('abs(') or neg.startswith('|'):
        neg = neg.replace('abs(', '').replace(')', '').replace('|', '')
    m = REG_RE.match(neg)
    if m:
        if m.group(1):
            return {(m.group(1), int(m.group(2)))}
        return {(m.group(3), i) for i in range(int(m.group(4)), int(m.group(5)) + 1)}
    if neg == 'vcc':
        return {('s', 'vcc')}
    if neg == 'exec':
        return {('s', 'exec')}
    if neg == 'm0':
        return {('s', 'm0')}
    return set()

TRANS = ('v_exp_', 'v_log_', 'v_rcp_', 'v_rsq_', 'v_sqrt_', 'v_sin_', 'v_cos_')

class Ins:
    def __init__(self, text):
        self.text = text
        t = text.split(';')[0].strip()
        parts = t.split(None, 1)
        self.op = parts[0]
        rest = parts[1] if len(parts) > 1 else ''
        ops = []
        cur = ''
        depth = 0
        for ch in rest:
            if ch == '[': depth += 1
            if ch == ']': depth -= 1
            if ch == ',' and depth == 0:
                ops.append(cur.strip()); cur = ''
            else:
                cur += ch
        if cur.strip(): ops.append(cur.strip())
        clean = []
        for o in ops:
            clean.append(o.split()[0] if o.split() else o)
        self.ops = clean
        op = self.op
        self.valu = op.startswith('v_')
        self.dpp = self.valu and ('_dpp' in op)
        self.perm = op.startswith('v_permlane')
        self.dot = op.startswith('v_dot')
        self.trans = op.startswith(TRANS)
        self.rl = op.startswith('v_readfirstlane') or op.startswith('v_readlane')
        self.vmem = op.startswith('buffer_') or op.startswith('global_')
        self.ds = op.startswith('ds_')
        self.salu = op.startswith('s_')
        self.store = ('_store' in op) or op.startswith('ds_write')
        self.widestore = self.vmem and self.store and ('x4' in op or 'x3' in op)
        self.nop = 0
        if op == 's_nop':
            self.nop = int(clean[0]) + 1
        w = set(); r = set()
        if self.store:
            for o in clean: r |= regs_of(o)
        elif self.perm:
            for o in clean[:2]:
                w |= regs_of(o); r |= regs_of(o)
        elif op.startswith('s_cmp') or op.startswith('s_cbranch') or op.startswith('s_branch') or op in ('s_waitcnt', 's_barrier', 's_endpgm', 's_nop', 's_setprio', 's_sleep'):
            for o in clean: r |= regs_of(o)
        elif 'atomic' in op:
            w |= regs_of(clean[0])
            for o in clean[1:]: r |= regs_of(o)
        else:
            if clean:
                w |= regs_of(clean[0])
                for o in clean[1:]: r |= regs_of(o)
            if self.dpp or op.startswith('v_fmac') or op.startswith('v_dot2c'):
                r |= regs_of(clean[0])
            if op.startswith('v_cndmask') and len(clean) == 3:
                r |= {('s', 'vcc')}
        self.w = w; self.r = r
        self.vw = {x for x in w if x[0] == 'v'}
        self.vr = {x for x in r if x[0] == 'v'}
        self.sw = {x for x in w if x[0] == 's'}
        self.sr = {x for x in r if x[0] == 's'}

def need_states(J, I):
    n = 0
    if J.valu:
        raw = J.vw & I.vr
        if raw:
            if I.dpp or I.perm: n = max(n, 2)
            if I.rl: n = max(n, 1)
            if J.trans and not I.trans: n = max(n, 1)
            if J.dot:
                if I.op != J.op: n = max(n, 3)
                else:
                    ab = set()
                    for o in I.ops[1:3]: ab |= regs_of(o)
                    if J.vw & ab: n = max(n, 3)
        if J.dot and (J.vw & I.vw) and I.op != J.op: n = max(n, 3)
        sraw = J.sw & I.sr
        if sraw:
            if I.valu: n = max(n, 4 if I.rl or 'writelane' in I.op else 2)
            if I.vmem: n = max(n, 5)
            if I.salu: n = max(n, 4)
    if J.widestore and I.valu and (J.vr & I.vw): n = max(n, 2)
    if J.salu and ('s', 'exec') in J.sw and I.dpp: n = max(n, 2)
    return n

class Asm:
    def __init__(self):
        self.lines = []
        self.hist = []
        self.nops = 0
    def stall_for(self, I):
        d = 0
        need = 0
        for J in reversed(self.hist):
            n = need_states(J, I)
            if n - d > need: need = n - d
            d += J.nop if J.nop else 1
            if d >= 6: break
        return need
    def e(self, text):
        I = Ins(text)
        s = self.stall_for(I)
        if s > 0:
            self._raw('s_nop %d' % (s - 1))
            self.nops += s
        self._raw(text, I)
    def _raw(self, text, I=None):
        if I is None: I = Ins(text)
        self.lines.append('    ' + text)
        self.hist.append(I)
        if len(self.hist) > 12: self.hist.pop(0)
    def label(self, name):
        self.lines.append(name + ':')
    def fence(self):
        self._raw('s_nop 4')
        self.hist = []
    def c(self, text):
        self.lines.append('    ; ' + text)
    def interleave(self, main, side):
        si = 0
        for mi, t in enumerate(main):
            while si < len(side) and side[si][1] <= mi and self.stall_for(Ins(side[si][0])) == 0:
                self.e(side[si][0]); si += 1
            self.e(t)
        while si < len(side):
            self.e(side[si][0]); si += 1
    def text(self):
        return '\n'.join(self.lines) + '\n'

class VAlloc:
    def __init__(self, start=0):
        self.n = start
    def get(self, cnt=1, align=1):
        if cnt >= 2 and align < 2: align = 2
        self.n = (self.n + align - 1) // align * align
        b = self.n
        self.n += cnt
        return b

def vr(b, n=1):
    return 'v%d' % b if n == 1 else 'v[%d:%d]' % (b, b + n - 1)
def sr(b, n=1):
    return 's%d' % b if n == 1 else 's[%d:%d]' % (b, b + n - 1)
```

```python
import sys, argparse
from asmlib import *

NAME = 'standalone__kv_cache_quant_pre_rope_vs_post_rope__sampling'

HEADER = open('cdna_kernels/%s.s.ref' % NAME).read().split('; Override launch')[0]

def gen(NW=4, U=16, L=10, LDS=98304, KNT='nt', VNT='nt', TNT='', SNT='nt'):
    NSPLIT = 4
    TPB = U // 8
    TILES = 128
    ITER = TILES // NW
    NB = ITER // TPB
    NP = ITER * 16
    PPL = NP // 64
    assert L < U and PPL in (4, 8)
    LW = NP * 8
    MB0 = NW * LW
    SB0 = MB0 + NW * 1024
    assert SB0 + NW * 16 <= LDS
    CSCALE = 128 ** -0.5 * 1.4426950408889634
    import struct
    def fbits(x): return struct.unpack('<I', struct.pack('<f', x))[0]

    A = Asm()
    e = A.e
    V = VAlloc(1)
    sQ, sQK, sKS, sKZ, sQV, sVS, sVZ, sQC = 4, 6, 8, 10, 12, 14, 16, 18
    sQS, sKC, sKSIN, sOUT = 20, 22, 24, 26
    sDBG, sWS = 28, 30
    rK, rV, rC, rS = 32, 36, 40, 44
    sHEAD, sSPLIT, sW, sK, sT, sCNT, sSELLO, sSELHI = 48, 49, 50, 51, 52, 53, 54, 55
    sTMP, sTMP2, sVo, sCS = 56, 57, 58, 59
    sE = 60
    vLane = V.get(); vTmp = V.get(); vTmp2 = V.get()
    amax = (U + L - 1) // 8
    voffK = [[V.get(), V.get()] for a in range(amax + 1)]
    voffC = [V.get() for a in range(amax + 1)]
    voffS = [V.get() for a in range(amax + 1)]
    qq = V.get(4, 4)
    vZa = V.get(); vDa = V.get()
    kd = [V.get(4, 4) for s in range(U)]
    cs = [V.get(2, 2) for s in range(U)]
    sn = [V.get(2, 2) for s in range(U)]
    blk0 = V.get(0, 4) if False else (V.get(4, 4))
    V.n = blk0
    xs = [V.get(4, 4) for i in range(2)]
    ts = [V.get(4, 4) for i in range(2)]
    Qs = [V.get(4, 4) for i in range(2)]
    P2 = [V.get(2, 2) for i in range(2)]
    P = [[V.get() for j in range(8)] for t in range(TPB)]
    vz = V.get(U, 4)
    acc = V.get(4, 4)
    nd = PPL // 2
    vKS = V.get(nd, 2); vVS = V.get(nd, 2); vVZ = V.get(nd, 2); vKZ = V.get(nd, 2)
    vM = V.get(); vL = V.get(); vC = V.get(); vPad = V.get()
    pt = blk0
    qld = [blk0 + 24 + 2 * i for i in range(6)]
    assert blk0 + 36 <= vz + U
    ptL = cs[0]
    assert sn[U - 1] + 2 - cs[0] >= 24 and cs[0] % 4 == 0
    nvgpr = V.n

    e('s_load_dwordx16 s[4:19], s[0:1], 0')
    e('s_load_dwordx8 s[20:27], s[0:1], 64')
    e('s_load_dwordx4 s[28:31], s[0:1], 96')
    e('s_cmp_ge_u32 s2, 256')
    e('s_cbranch_scc1 L_end')
    e('v_and_b32 %s, 63, v0' % vr(vLane))
    e('v_lshrrev_b32 %s, 6, v0' % vr(vTmp))
    e('s_lshr_b32 %s, s2, 2' % sr(sHEAD))
    e('s_and_b32 %s, s2, 3' % sr(sSPLIT))
    e('v_readfirstlane_b32 %s, %s' % (sr(sW), vr(vTmp)))
    e('v_lshlrev_b32 %s, 4, %s' % (vr(voffK[0][0]), vr(vLane)))
    e('v_lshlrev_b32 %s, 3, %s' % (vr(voffC[0]), vr(vLane)))
    e('v_xor_b32 %s, 0x80, %s' % (vr(voffS[0]), vr(voffC[0])))
    e('v_add_u32 %s, 0x1000, %s' % (vr(voffK[0][1]), vr(voffK[0][0])))
    for a in range(1, amax + 1):
        e('v_add_u32 %s, 0x%x, %s' % (vr(voffK[a][0]), a * NW * 8192, vr(voffK[0][0])))
        e('v_add_u32 %s, 0x%x, %s' % (vr(voffK[a][1]), a * NW * 8192 + 4096, vr(voffK[0][0])))
        e('v_add_u32 %s, 0x%x, %s' % (vr(voffC[a]), a * NW * 4096, vr(voffC[0])))
        e('v_add_u32 %s, 0x%x, %s' % (vr(voffS[a]), a * NW * 4096, vr(voffS[0])))
    e('s_lshl_b32 %s, %s, 13' % (sr(sK), sr(sW)))
    e('s_lshl_b32 %s, %s, 12' % (sr(sT), sr(sW)))
    e('s_mov_b32 %s, %s' % (sr(sVo), sr(sK)))
    e('s_mov_b32 %s, 0x05040100' % sr(sSELLO))
    e('s_mov_b32 %s, 0x07060302' % sr(sSELHI))
    e('s_mov_b32 %s, 0x%08x' % (sr(sCS), fbits(CSCALE)))
    e('v_and_b32 %s, 0xf8, %s' % (vr(pt + 0), vr(voffC[0])))
    e('v_xor_b32 %s, 0x80, %s' % (vr(pt + 1), vr(pt + 0)))
    e('s_lshl_b32 %s, %s, 8' % (sr(sTMP), sr(sHEAD)))
    e('v_add_u32 %s, %s, %s' % (vr(pt + 2), sr(sTMP), vr(pt + 0)))
    e('v_add_u32 %s, %s, %s' % (vr(pt + 3), sr(sTMP), vr(pt + 1)))
    if PPL == 8:
        e('v_lshrrev_b32 %s, 1, %s' % (vr(pt + 4), vr(vLane)))
        e('v_mul_u32_u24 %s, %d, %s' % (vr(pt + 4), NW * 32, vr(pt + 4)))
        e('v_and_b32 %s, 1, %s' % (vr(pt + 5), vr(vLane)))
        e('v_lshl_add_u32 %s, %s, 4, %s' % (vr(pt + 4), vr(pt + 5), vr(pt + 4)))
    else:
        e('v_lshrrev_b32 %s, 2, %s' % (vr(pt + 4), vr(vLane)))
        e('v_mul_u32_u24 %s, %d, %s' % (vr(pt + 4), NW * 32, vr(pt + 4)))
        e('v_and_b32 %s, 3, %s' % (vr(pt + 5), vr(vLane)))
        e('v_lshl_add_u32 %s, %s, 3, %s' % (vr(pt + 4), vr(pt + 5), vr(pt + 4)))
    e('s_lshl_b32 %s, s2, 12' % sr(sTMP))
    e('s_lshl_b32 %s, %s, 5' % (sr(sTMP2), sr(sW)))
    e('s_add_u32 %s, %s, %s' % (sr(sTMP), sr(sTMP), sr(sTMP2)))
    e('v_add_u32 %s, %s, %s' % (vr(pt + 4), sr(sTMP), vr(pt + 4)))
    e('s_waitcnt lgkmcnt(0)')
    e('s_lshl_b32 %s, s2, 20' % sr(sTMP))
    for (r, p) in ((rK, sQK), (rV, sQV)):
        e('s_add_u32 %s, %s, %s' % (sr(r), sr(p), sr(sTMP)))
        e('s_addc_u32 %s, %s, 0' % (sr(r + 1), sr(p + 1)))
        e('s_and_b32 %s, %s, 0xffff' % (sr(r + 1), sr(r + 1)))
        e('s_mov_b32 %s, 0x100000' % sr(r + 2))
        e('s_mov_b32 %s, 0x20000' % sr(r + 3))
    e('s_lshl_b32 %s, %s, 19' % (sr(sTMP), sr(sSPLIT)))
    for (r, p) in ((rC, sKC), (rS, sKSIN)):
        e('s_add_u32 %s, %s, %s' % (sr(r), sr(p), sr(sTMP)))
        e('s_addc_u32 %s, %s, 0' % (sr(r + 1), sr(p + 1)))
        e('s_and_b32 %s, %s, 0xffff' % (sr(r + 1), sr(r + 1)))
        e('s_mov_b32 %s, 0x80000' % sr(r + 2))
        e('s_mov_b32 %s, 0x20000' % sr(r + 3))

    queue = []
    def issue(text, tag):
        e(text); queue.append(tag)
    def waitfor(tag, extra=''):
        idx = max(i for i, t in enumerate(queue) if t == tag)
        n = len(queue) - 1 - idx
        del queue[:idx + 1]
        assert n <= 63
        return ('s_waitcnt vmcnt(%d)' % n) + extra

    def ldx(nd): return 'global_load_dword' if nd == 1 else 'global_load_dwordx%d' % nd
    issue('global_load_dwordx2 %s, %s, %s' % (vr(qld[0], 2), vr(pt + 2), sr(sQ, 2)), 'q')
    issue('global_load_dwordx2 %s, %s, %s' % (vr(qld[1], 2), vr(pt + 3), sr(sQ, 2)), 'q')
    issue('global_load_dwordx2 %s, %s, %s' % (vr(qld[2], 2), vr(pt + 0), sr(sQC, 2)), 'q')
    issue('global_load_dwordx2 %s, %s, %s' % (vr(qld[3], 2), vr(pt + 1), sr(sQC, 2)), 'q')
    issue('global_load_dwordx2 %s, %s, %s' % (vr(qld[4], 2), vr(pt + 0), sr(sQS, 2)), 'q')
    issue('global_load_dwordx2 %s, %s, %s' % (vr(qld[5], 2), vr(pt + 1), sr(sQS, 2)), 'q')
    issue('%s %s, %s, %s %s' % (ldx(nd), vr(vKZ, nd), vr(pt + 4), sr(sKZ, 2), SNT), 'kz')
    issue('%s %s, %s, %s %s' % (ldx(nd), vr(vKS, nd), vr(pt + 4), sr(sKS, 2), SNT), 'sc')
    issue('%s %s, %s, %s %s' % (ldx(nd), vr(vVS, nd), vr(pt + 4), sr(sVS, 2), SNT), 'sc')
    issue('%s %s, %s, %s %s' % (ldx(nd), vr(vVZ, nd), vr(pt + 4), sr(sVZ, 2), SNT), 'sc')

    def issueK(r, emit):
        a, jj, slot = r // 8, r % 8, r % U
        emit('buffer_load_dwordx2 %s, %s, %s, %s offen offset:%d %s' % (vr(cs[slot], 2), vr(voffC[a]), sr(rC, 4), sr(sT), jj * 512, TNT))
        emit('buffer_load_dwordx2 %s, %s, %s, %s offen offset:%d %s' % (vr(sn[slot], 2), vr(voffS[a]), sr(rS, 4), sr(sT), jj * 512, TNT))
        emit('buffer_load_dwordx4 %s, %s, %s, %s offen offset:%d %s' % (vr(kd[slot], 4), vr(voffK[a][jj // 4]), sr(rK, 4), sr(sK), (jj % 4) * 1024, KNT))
    def issueV(r, emit):
        a, jj, slot = r // 8, r % 8, r % U
        emit('buffer_load_dwordx4 %s, %s, %s, %s offen offset:%d %s' % (vr(kd[slot], 4), vr(voffK[a][jj // 4]), sr(rV, 4), sr(sVo), (jj % 4) * 1024, VNT))

    for r in range(L):
        issueK(r, e)
        queue.extend([('K', r)] * 3)

    e('s_mul_i32 %s, %s, %d' % (sr(sTMP), sr(sW), LW))
    e('v_lshrrev_b32 %s, 5, %s' % (vr(vTmp), vr(vLane)))
    e('v_mul_u32_u24 %s, %d, %s' % (vr(vZa), NP * 2, vr(vTmp)))
    e('v_add_u32 %s, %s, %s' % (vr(vZa), sr(sTMP), vr(vZa)))
    e('v_bfe_u32 %s, %s, 4, 1' % (vr(pt + 8), vr(vLane)))
    e('v_bfe_u32 %s, %s, 3, 1' % (vr(pt + 9), vr(vLane)))
    e('v_bfe_u32 %s, %s, 2, 1' % (vr(pt + 10), vr(vLane)))
    e('v_lshl_add_u32 %s, %s, 1, %s' % (vr(pt + 8), vr(pt + 9), vr(pt + 8)))
    e('v_lshl_add_u32 %s, %s, 2, %s' % (vr(pt + 8), vr(pt + 10), vr(pt + 8)))
    e('v_lshl_add_u32 %s, %s, 1, %s' % (vr(pt + 8), vr(pt + 8), vr(vTmp)))
    e('v_lshlrev_b32 %s, 2, %s' % (vr(pt + 8), vr(pt + 8)))
    e('s_add_u32 %s, %s, %d' % (sr(sTMP2), sr(sTMP), NP * 4))
    e('v_add_u32 %s, %s, %s' % (vr(vDa), sr(sTMP2), vr(pt + 8)))
    vZw = pt + 11
    e('v_mul_u32_u24 %s, %d, %s' % (vr(vZw), PPL * 2, vr(vLane)))
    e('v_add_u32 %s, %s, %s' % (vr(vZw), sr(sTMP), vr(vZw)))
    vZwK = V.get(); vDr = V.get()
    e('v_mov_b32 %s, %s' % (vr(vZwK), vr(vZw)))
    e('v_mul_u32_u24 %s, %d, %s' % (vr(vDr), PPL * 4, vr(vLane)))
    e('v_add_u32 %s, %s, %s' % (vr(vDr), sr(sTMP2), vr(vDr)))
    nvgpr = V.n

    e(waitfor('q'))
    f = pt + 12
    sg = pt + 5
    e('v_and_b32 %s, 16, %s' % (vr(sg), vr(vLane)))
    e('v_lshlrev_b32 %s, 27, %s' % (vr(sg), vr(sg)))
    e('v_xor_b32 %s, 0xbf800000, %s' % (vr(sg), vr(sg)))
    for ee in range(4):
        dw, hi = ee // 2, ee % 2
        def unpack(dst, src):
            if hi: e('v_and_b32 %s, 0xffff0000, %s' % (vr(dst), vr(src + dw)))
            else: e('v_lshlrev_b32 %s, 16, %s' % (vr(dst), vr(src + dw)))
        for i in range(6): unpack(f + i, qld[i])
        q_, qp, c_, cp, s_, sp = [f + i for i in range(6)]
        t1, t2, t3, t4 = f + 6, f + 7, f + 8, f + 9
        e('v_mul_f32 %s, %s, %s' % (vr(t1), vr(q_), vr(c_)))
        e('v_mul_f32 %s, %s, %s' % (vr(t2), vr(qp), vr(s_)))
        e('v_mul_f32 %s, %s, %s' % (vr(t2), vr(t2), vr(sg)))
        e('v_mul_f32 %s, %s, %s' % (vr(t3), vr(qp), vr(cp)))
        e('v_mul_f32 %s, %s, %s' % (vr(t4), vr(q_), vr(sp)))
        e('v_mul_f32 %s, -%s, %s' % (vr(t4), vr(t4), vr(sg)))
        e('v_cvt_pk_bf16_f32 %s, %s, %s' % (vr(t1), vr(t1), vr(t2)))
        e('v_cvt_pk_bf16_f32 %s, %s, %s' % (vr(t3), vr(t3), vr(t4)))
        e('v_and_b32 %s, 0xffff0000, %s' % (vr(t2), vr(t1)))
        e('v_lshlrev_b32 %s, 16, %s' % (vr(t1), vr(t1)))
        e('v_and_b32 %s, 0xffff0000, %s' % (vr(t4), vr(t3)))
        e('v_lshlrev_b32 %s, 16, %s' % (vr(t3), vr(t3)))
        e('v_add_f32 %s, %s, %s' % (vr(t1), vr(t1), vr(t2)))
        e('v_add_f32 %s, %s, %s' % (vr(t3), vr(t3), vr(t4)))
        e('v_mul_f32 %s, -%s, %s' % (vr(t3), vr(t3), vr(sg)))
        e('v_cvt_pk_bf16_f32 %s, %s, %s' % (vr(qq + ee), vr(t1), vr(t3)))
    e(waitfor('kz'))
    def split_write(src, dstaddr, tmp):
        for m in range(nd):
            e('v_lshlrev_b32 %s, 16, %s' % (vr(tmp + m), vr(src + m)))
            e('v_and_b32 %s, 0xffff0000, %s' % (vr(tmp + 4 + m), vr(src + m)))
        w = 'ds_write_b128' if nd == 4 else 'ds_write_b64'
        e('%s %s, %s' % (w, vr(dstaddr), vr(tmp, nd)))
        e('%s %s, %s offset:%d' % (w, vr(dstaddr), vr(tmp + 4, nd), NP * 2))
    split_write(vKZ, vZwK, pt + 12)
    for i in range(4): e('v_mov_b32 %s, 0' % vr(acc + i))
    e('s_mov_b32 %s, %d' % (sr(sCNT), NB - 1))
    queue[:] = [t for t in queue if t != 'sc']

    def kbody(last):
        main = []; side = []
        q = list(queue)
        def em(t): main.append(t)
        for g in range(U // 4):
            em('ds_read_b128 %s, %s offset:%d' % (vr(vz + 4 * g, 4), vr(vZa), 16 * g))
        for j in range(U):
            r = j + L
            if r < U or not last:
                issueK(r, em); q.extend([('K', r)] * 3)
            else:
                issueV(r - U, em); q.append(('V', r - U))
            idx = max(i for i, t in enumerate(q) if t == ('K', j))
            n = len(q) - 1 - idx
            del q[:idx + 1]
            em('s_waitcnt vmcnt(%d)' % n)
            x, t, Q = xs[j % 2], ts[j % 2], Qs[j % 2]
            for i in range(4): em('v_cvt_f32_i32 %s, %s' % (vr(x + i), vr(kd[j] + i)))
            em('v_perm_b32 %s, %s, %s, %s' % (vr(t + 0), vr(sn[j]), vr(cs[j]), sr(sSELLO)))
            em('v_perm_b32 %s, %s, %s, %s' % (vr(t + 1), vr(sn[j]), vr(cs[j]), sr(sSELHI)))
            em('v_perm_b32 %s, %s, %s, %s' % (vr(t + 2), vr(sn[j] + 1), vr(cs[j] + 1), sr(sSELLO)))
            em('v_perm_b32 %s, %s, %s, %s' % (vr(t + 3), vr(sn[j] + 1), vr(cs[j] + 1), sr(sSELHI)))
            for i in range(4): em('v_dot2_f32_bf16 %s, %s, %s, 0' % (vr(Q + i), vr(t + i), vr(qq + i)))
            if j == 0: em('s_waitcnt lgkmcnt(0)')
            zp = vz + (j // 2) * 2
            if j % 2 == 0: mod = 'op_sel:[0,0] op_sel_hi:[1,0] neg_lo:[0,1] neg_hi:[0,1]'
            else: mod = 'op_sel:[0,1] op_sel_hi:[1,1] neg_lo:[0,1] neg_hi:[0,1]'
            em('v_pk_add_f32 %s, %s, %s %s' % (vr(x, 2), vr(x, 2), vr(zp, 2), mod))
            em('v_pk_add_f32 %s, %s, %s %s' % (vr(x + 2, 2), vr(x + 2, 2), vr(zp, 2), mod))
            p2 = P2[j % 2]
            em('v_pk_mul_f32 %s, %s, %s' % (vr(p2, 2), vr(x, 2), vr(Q, 2)))
            em('v_pk_fma_f32 %s, %s, %s, %s' % (vr(p2, 2), vr(x + 2, 2), vr(Q + 2, 2), vr(p2, 2)))
            tl, jj = j // 8, j % 8
            Pt = P[tl]
            em('v_add_f32 %s, %s, %s' % (vr(Pt[jj]), vr(p2), vr(p2 + 1)))
            rdy = len(main)
            if jj % 2 == 1:
                a, b = Pt[jj - 1], Pt[jj]
                side.append(('v_permlane16_swap_b32 %s, %s' % (vr(a), vr(b)), rdy))
                side.append(('v_add_f32 %s, %s, %s' % (vr(a), vr(a), vr(b)), rdy))
            if jj % 4 == 3:
                a, b = Pt[jj - 3], Pt[jj - 1]
                side.append(('v_add_f32_dpp %s, %s, %s row_ror:8 row_mask:0xf bank_mask:0x3' % (vr(a), vr(a), vr(a)), rdy))
                side.append(('v_add_f32_dpp %s, %s, %s row_ror:8 row_mask:0xf bank_mask:0xc' % (vr(a), vr(b), vr(b)), rdy))
            if jj == 7:
                a, b = Pt[0], Pt[4]
                side.append(('v_add_f32_dpp %s, %s, %s row_half_mirror row_mask:0xf bank_mask:0x5' % (vr(a), vr(a), vr(a)), rdy))
                side.append(('v_add_f32_dpp %s, %s, %s row_half_mirror row_mask:0xf bank_mask:0xa' % (vr(a), vr(b), vr(b)), rdy))
                side.append(('v_add_f32_dpp %s, %s, %s quad_perm:[2,3,0,1] row_mask:0xf bank_mask:0xf' % (vr(a), vr(a), vr(a)), rdy))
                side.append(('v_add_f32_dpp %s, %s, %s quad_perm:[1,0,3,2] row_mask:0xf bank_mask:0xf' % (vr(a), vr(a), vr(a)), rdy))
                side.append(('ds_write_b32 %s, %s offset:%d' % (vr(vDa), vr(a), tl * 64), rdy))
        A.interleave(main, side)
        return q

    A.fence()
    A.label('L_kloop')
    q1 = kbody(False)
    assert [(t[0], t[1] - U) for t in q1] == queue, (q1, queue)
    e('v_add_u32 %s, %d, %s' % (vr(vZa), U * 4, vr(vZa)))
    e('v_add_u32 %s, %d, %s' % (vr(vDa), TPB * 64, vr(vDa)))
    e('s_add_u32 %s, %s, %d' % (sr(sK), sr(sK), TPB * NW * 8192))
    e('s_add_u32 %s, %s, %d' % (sr(sT), sr(sT), TPB * NW * 4096))
    e('s_sub_u32 %s, %s, 1' % (sr(sCNT), sr(sCNT)))
    e('s_cmp_lg_u32 %s, 0' % sr(sCNT))
    e('s_cbranch_scc1 L_kloop')
    A.c('last K body')
    qv = kbody(True)
    queue[:] = qv
    assert queue == [('V', i) for i in range(L)]

    A.c('phase 2')
    pt = ptL
    d = pt
    kf = pt + 8
    for g in range(PPL // 4):
        e('ds_read_b128 %s, %s offset:%d' % (vr(d + 4 * g, 4), vr(vDr), 16 * g))
    for m in range(nd):
        e('v_lshlrev_b32 %s, 16, %s' % (vr(kf + 2 * m), vr(vKS + m)))
        e('v_and_b32 %s, 0xffff0000, %s' % (vr(kf + 2 * m + 1), vr(vKS + m)))
    e('s_waitcnt lgkmcnt(0)')
    for m in range(nd):
        e('v_pk_mul_f32 %s, %s, %s' % (vr(d + 2 * m, 2), vr(d + 2 * m, 2), vr(kf + 2 * m, 2)))
    e('v_max3_f32 %s, %s, %s, %s' % (vr(vM), vr(d), vr(d + 1), vr(d + 2)))
    if PPL == 8:
        e('v_max3_f32 %s, %s, %s, %s' % (vr(vM), vr(vM), vr(d + 3), vr(d + 4)))
        e('v_max3_f32 %s, %s, %s, %s' % (vr(vM), vr(vM), vr(d + 5), vr(d + 6)))
        e('v_max_f32 %s, %s, %s' % (vr(vM), vr(vM), vr(d + 7)))
    else:
        e('v_max_f32 %s, %s, %s' % (vr(vM), vr(vM), vr(d + 3)))
    def wave_reduce(op, v, tmp):
        e('%s_dpp %s, %s, %s quad_perm:[1,0,3,2] row_mask:0xf bank_mask:0xf' % (op, vr(v), vr(v), vr(v)))
        e('%s_dpp %s, %s, %s quad_perm:[2,3,0,1] row_mask:0xf bank_mask:0xf' % (op, vr(v), vr(v), vr(v)))
        e('%s_dpp %s, %s, %s row_half_mirror row_mask:0xf bank_mask:0xf' % (op, vr(v), vr(v), vr(v)))
        e('%s_dpp %s, %s, %s row_mirror row_mask:0xf bank_mask:0xf' % (op, vr(v), vr(v), vr(v)))
        e('v_mov_b32 %s, %s' % (vr(tmp), vr(v)))
        e('v_permlane16_swap_b32 %s, %s' % (vr(v), vr(tmp)))
        e('%s %s, %s, %s' % (op, vr(v), vr(v), vr(tmp)))
        e('v_mov_b32 %s, %s' % (vr(tmp), vr(v)))
        e('v_permlane32_swap_b32 %s, %s' % (vr(v), vr(tmp)))
        e('%s %s, %s, %s' % (op, vr(v), vr(v), vr(tmp)))
    wave_reduce('v_max_f32', vM, vTmp)
    e('v_mul_f32 %s, %s, %s' % (vr(vM), sr(sCS), vr(vM)))
    for i in range(PPL):
        e('v_fma_f32 %s, %s, %s, -%s' % (vr(d + i), vr(d + i), sr(sCS), vr(vM)))
    for i in range(PPL):
        e('v_exp_f32 %s, %s' % (vr(d + i), vr(d + i)))
    for m in range(nd):
        e('v_lshlrev_b32 %s, 16, %s' % (vr(kf + 2 * m), vr(vVS + m)))
        e('v_and_b32 %s, 0xffff0000, %s' % (vr(kf + 2 * m + 1), vr(vVS + m)))
    e('v_add_f32 %s, %s, %s' % (vr(vL), vr(d), vr(d + 1)))
    for i in range(2, PPL):
        e('v_add_f32 %s, %s, %s' % (vr(vL), vr(vL), vr(d + i)))
    for m in range(nd):
        e('v_pk_mul_f32 %s, %s, %s' % (vr(d + 2 * m, 2), vr(d + 2 * m, 2), vr(kf + 2 * m, 2)))
    we, wo = pt + 16, pt + 20
    for m in range(nd):
        e('v_mov_b32 %s, %s' % (vr(we + m), vr(d + 2 * m)))
        e('v_mov_b32 %s, %s' % (vr(wo + m), vr(d + 2 * m + 1)))
    w = 'ds_write_b128' if nd == 4 else 'ds_write_b64'
    e('%s %s, %s' % (w, vr(vZwK), vr(we, nd)))
    e('%s %s, %s offset:%d' % (w, vr(vZwK), vr(wo, nd), NP * 2))
    for m in range(nd):
        e('v_lshlrev_b32 %s, 16, %s' % (vr(kf + 2 * m), vr(vVZ + m)))
        e('v_and_b32 %s, 0xffff0000, %s' % (vr(kf + 2 * m + 1), vr(vVZ + m)))
    e('v_mul_f32 %s, %s, %s' % (vr(vC), vr(d), vr(kf)))
    for i in range(1, PPL):
        e('v_fmac_f32 %s, %s, %s' % (vr(vC), vr(d + i), vr(kf + i)))
    wave_reduce('v_add_f32', vL, vTmp)
    wave_reduce('v_add_f32', vC, vTmp2)
    e('v_subrev_u32 %s, %d, %s' % (vr(vZa), (NB - 1) * U * 4, vr(vZa)))
    e('s_mov_b32 %s, %d' % (sr(sCNT), NB - 1))

    def vbody(last):
        q = list(queue)
        for g in range(U // 4):
            e('ds_read_b128 %s, %s offset:%d' % (vr(vz + 4 * g, 4), vr(vZa), 16 * g))
        for j in range(U):
            r = j + L
            if r < U or not last:
                issueV(r, e); q.append(('V', r))
            idx = max(i for i, t in enumerate(q) if t == ('V', j))
            n = len(q) - 1 - idx
            del q[:idx + 1]
            e('s_waitcnt vmcnt(%d)%s' % (n, ' lgkmcnt(0)' if j == 0 else ''))
            x = xs[j % 2]
            for i in range(4): e('v_cvt_f32_i32 %s, %s' % (vr(x + i), vr(kd[j] + i)))
            wp = vz + (j // 2) * 2
            mod = 'op_sel_hi:[1,0,1]' if j % 2 == 0 else 'op_sel:[0,1,0] op_sel_hi:[1,1,1]'
            e('v_pk_fma_f32 %s, %s, %s, %s %s' % (vr(acc, 2), vr(x, 2), vr(wp, 2), vr(acc, 2), mod))
            e('v_pk_fma_f32 %s, %s, %s, %s %s' % (vr(acc + 2, 2), vr(x + 2, 2), vr(wp, 2), vr(acc + 2, 2), mod))
        return q
    A.fence()
    A.label('L_vloop')
    q1 = vbody(False)
    assert [(t[0], t[1] - U) for t in q1] == queue
    e('v_add_u32 %s, %d, %s' % (vr(vZa), U * 4, vr(vZa)))
    e('s_add_u32 %s, %s, %d' % (sr(sVo), sr(sVo), TPB * NW * 8192))
    e('s_sub_u32 %s, %s, 1' % (sr(sCNT), sr(sCNT)))
    e('s_cmp_lg_u32 %s, 0' % sr(sCNT))
    e('s_cbranch_scc1 L_vloop')
    qe = vbody(True)
    assert qe == []

    A.c('merge')
    e('s_lshl_b32 %s, %s, 10' % (sr(sTMP), sr(sW)))
    e('s_add_u32 %s, %s, %d' % (sr(sTMP), sr(sTMP), MB0))
    e('v_add_u32 %s, %s, %s' % (vr(vTmp), sr(sTMP), vr(voffK[0][0])))
    e('ds_write_b128 %s, %s' % (vr(vTmp), vr(acc, 4)))
    e('s_lshl_b32 %s, %s, 4' % (sr(sTMP), sr(sW)))
    e('s_add_u32 %s, %s, %d' % (sr(sTMP), sr(sTMP), SB0))
    e('v_mov_b32 %s, %s' % (vr(vTmp2), sr(sTMP)))
    st = pt
    e('v_mov_b32 %s, %s' % (vr(st + 0), vr(vM)))
    e('v_mov_b32 %s, %s' % (vr(st + 1), vr(vL)))
    e('v_mov_b32 %s, %s' % (vr(st + 2), vr(vC)))
    e('v_mov_b32 %s, 0' % (vr(st + 3)))
    e('s_mov_b64 exec, 1')
    e('ds_write_b128 %s, %s' % (vr(vTmp2), vr(st, 4)))
    e('s_mov_b64 exec, -1')
    e('s_waitcnt lgkmcnt(0)')
    e('s_barrier')
    e('s_cmp_lg_u32 %s, 0' % sr(sW))
    e('s_cbranch_scc1 L_end')
    base = kd[0]
    stw = [base + 4 * w for w in range(NW)]
    ev = [base + 4 * NW + 4 * w for w in range(NW)]
    assert base + 8 * NW <= cs[0]
    e('v_mov_b32 %s, %d' % (vr(vTmp), SB0))
    e('v_add_u32 %s, %d, %s' % (vr(vTmp2), MB0, vr(voffC[0])))
    for w in range(NW):
        e('ds_read_b128 %s, %s offset:%d' % (vr(stw[w], 4), vr(vTmp), 16 * w))
    for w in range(NW):
        e('ds_read_b64 %s, %s offset:%d' % (vr(ev[w], 2), vr(vTmp2), 1024 * w))
        e('ds_read_b64 %s, %s offset:%d' % (vr(ev[w] + 2, 2), vr(vTmp2), 1024 * w + 512))
    e('s_waitcnt lgkmcnt(0)')
    def combine(ms, ls, os_, outM, outL, outO, tmp, cs_=None):
        n = len(ms)
        e('v_max_f32 %s, %s, %s' % (vr(outM), vr(ms[0]), vr(ms[1])))
        for i in range(2, n): e('v_max_f32 %s, %s, %s' % (vr(outM), vr(outM), vr(ms[i])))
        for i in range(n): e('v_sub_f32 %s, %s, %s' % (vr(ms[i]), vr(ms[i]), vr(outM)))
        for i in range(n): e('v_exp_f32 %s, %s' % (vr(ms[i]), vr(ms[i])))
        e('v_mul_f32 %s, %s, %s' % (vr(outL), vr(ms[0]), vr(ls[0])))
        for i in range(1, n): e('v_fmac_f32 %s, %s, %s' % (vr(outL), vr(ms[i]), vr(ls[i])))
        e('v_mul_f32 %s, %s, %s' % (vr(outO), vr(ms[0]), vr(os_[0])))
        e('v_mul_f32 %s, %s, %s' % (vr(outO + 1), vr(ms[0]), vr(os_[0] + 1)))
        for i in range(1, n):
            e('v_fmac_f32 %s, %s, %s' % (vr(outO), vr(ms[i]), vr(os_[i])))
            e('v_fmac_f32 %s, %s, %s' % (vr(outO + 1), vr(ms[i]), vr(os_[i] + 1)))
    for w in range(NW):
        e('v_pk_add_f32 %s, %s, %s' % (vr(ev[w], 2), vr(ev[w], 2), vr(ev[w] + 2, 2)))
        e('v_sub_f32 %s, %s, %s' % (vr(ev[w]), vr(ev[w]), vr(stw[w] + 2)))
        e('v_sub_f32 %s, %s, %s' % (vr(ev[w] + 1), vr(ev[w] + 1), vr(stw[w] + 2)))
    res = pt
    combine([stw[w] for w in range(NW)], [stw[w] + 1 for w in range(NW)], ev, res + 2, res + 3, res, None)
    e('s_lshl_b32 %s, s2, 10' % sr(sTMP))
    e('v_add_u32 %s, %s, %s' % (vr(vTmp), sr(sTMP), vr(voffK[0][0])))
    e('global_store_dwordx4 %s, %s, %s sc0 sc1' % (vr(vTmp), vr(res, 4), sr(sWS, 2)))
    e('s_lshl_b32 %s, %s, 2' % (sr(sTMP), sr(sHEAD)))
    e('v_mov_b32 %s, %s' % (vr(vTmp2), sr(sTMP)))
    e('v_mov_b32 %s, 1' % vr(vPad))
    e('s_waitcnt vmcnt(0)')
    e('s_mov_b64 exec, 1')
    e('global_atomic_add %s, %s, %s, %s sc0' % (vr(vM), vr(vTmp2), vr(vPad), sr(sDBG, 2)))
    e('s_waitcnt vmcnt(0)')
    e('s_mov_b64 exec, -1')
    e('v_readfirstlane_b32 %s, %s' % (sr(sTMP), vr(vM)))
    e('s_cmp_lg_u32 %s, %d' % (sr(sTMP), NSPLIT - 1))
    e('s_cbranch_scc1 L_end')
    e('s_lshl_b32 %s, %s, 12' % (sr(sTMP), sr(sHEAD)))
    e('v_add_u32 %s, %s, %s' % (vr(vTmp), sr(sTMP), vr(voffK[0][0])))
    pr = [base + 4 * i for i in range(NSPLIT)]
    for i in range(NSPLIT):
        e('global_load_dwordx4 %s, %s, %s offset:%d sc0 sc1' % (vr(pr[i], 4), vr(vTmp), sr(sWS, 2), 1024 * i) if i < 4 else '')
    e('s_waitcnt vmcnt(0)')
    combine([p + 2 for p in pr], [p + 3 for p in pr], pr, res + 2, res + 3, res, None)
    e('v_rcp_f32 %s, %s' % (vr(res + 3), vr(res + 3)))
    e('v_mul_f32 %s, %s, %s' % (vr(res), vr(res), vr(res + 3)))
    e('v_mul_f32 %s, %s, %s' % (vr(res + 1), vr(res + 1), vr(res + 3)))
    e('v_cvt_pk_bf16_f32 %s, %s, %s' % (vr(res), vr(res), vr(res + 1)))
    e('s_lshl_b32 %s, %s, 8' % (sr(sTMP), sr(sHEAD)))
    e('v_lshlrev_b32 %s, 2, %s' % (vr(vTmp), vr(vLane)))
    e('v_add_u32 %s, %s, %s' % (vr(vTmp), sr(sTMP), vr(vTmp)))
    e('global_store_dword %s, %s, %s' % (vr(vTmp), vr(res), sr(sOUT, 2)))
    A.label('L_end')
    e('s_endpgm')

    nv = (nvgpr + 7) // 8 * 8
    out = HEADER
    out += '; generated by gen1.py NW=%d U=%d L=%d\n' % (NW, U, L)
    out += '; @launch grid=(256,1,1) block=(%d,1,1) lds=%d\n' % (NW * 64, LDS)
    out += '.amdgcn_target "amdgcn-amd-amdhsa--gfx950"\n.text\n.globl %s_kernel\n.p2align 8\n.type %s_kernel,@function\n%s_kernel:\n' % (NAME, NAME, NAME)
    out += A.text()
    out += '.fill 64, 4, 0xbf800000\n'
    out += '.section .rodata,"a"\n.p2align 6\n.amdhsa_kernel %s_kernel\n' % NAME
    out += '  .amdhsa_next_free_vgpr %d\n  .amdhsa_next_free_sgpr 64\n  .amdhsa_accum_offset %d\n' % (nv, nv)
    out += '  .amdhsa_group_segment_fixed_size 0\n  .amdhsa_kernarg_size 112\n  .amdhsa_user_sgpr_count 2\n  .amdhsa_user_sgpr_kernarg_segment_ptr 1\n  .amdhsa_system_sgpr_workgroup_id_x 1\n.end_amdhsa_kernel\n'
    return out, nvgpr, A.nops

if __name__ == '__main__':
    ap = argparse.ArgumentParser()
    ap.add_argument('--nw', type=int, default=4)
    ap.add_argument('--u', type=int, default=16)
    ap.add_argument('--l', type=int, default=10)
    ap.add_argument('--lds', type=int, default=98304)
    ap.add_argument('-o', default='cdna_kernels/%s.s' % NAME)
    a = ap.parse_args()
    s, nv, nops = gen(NW=a.nw, U=a.u, L=a.l, LDS=a.lds)
    open(a.o, 'w').write(s)
    print('wrote', a.o, 'vgprs', nv, 'nop states', nops, 'lines', s.count('\n'))
```
